```python
import torch

def _softmax(x, axis=-1):
    return torch.softmax(x, dim=axis)
def _gelu(x):
    return torch.nn.functional.gelu(x, approximate="tanh")
def _silu(x):
    return torch.nn.functional.silu(x)
def _sigmoid(x):
    return torch.sigmoid(x)
def _layernorm(x, axis=-1, eps=1e-5):
    m = x.mean(dim=axis, keepdim=True)
    v = x.var(dim=axis, keepdim=True, unbiased=False)
    return (x - m) / torch.sqrt(v + eps)
def _scatter_add(tgt, idx, src, axis=0):
    return tgt.clone().index_add_(axis, idx, src)
def _segment_sum(src, seg, n):
    out = torch.zeros((n,) + src.shape[1:], dtype=src.dtype)
    return out.index_add_(0, seg, src)
def _pad(x, pw):
    flat = tuple(v for pair in reversed(pw) for v in pair)
    return torch.nn.functional.pad(x, flat)

kernel_name = 'parallel_sum__ssm_conv_s5__geglu_ffn__prompt'

def setup_inputs():

    _w = (lambda a: (lambda t: t.to(torch.bfloat16) if t.is_floating_point() else t)(torch.as_tensor(a)))
    def _A_setup():
        B, S, D = 1, 2048, 640
        P = D
        Lambda_re = -0.5 * (lambda _x: torch.exp(torch.as_tensor(_x)))((lambda *s: torch.randn(*s, dtype=torch.bfloat16) * 0.8)(P))
        Lambda_im = (lambda *s: torch.randn(*s, dtype=torch.bfloat16) * 0.8)(P) * 1.0
        B_re = (lambda *s: torch.randn(*s, dtype=torch.bfloat16) * 0.8)(P, D) * (D ** -0.5)
        B_im = (lambda *s: torch.randn(*s, dtype=torch.bfloat16) * 0.8)(P, D) * (D ** -0.5)
        C_re = (lambda *s: torch.randn(*s, dtype=torch.bfloat16) * 0.8)(D, P) * (P ** -0.5)
        C_im = (lambda *s: torch.randn(*s, dtype=torch.bfloat16) * 0.8)(D, P) * (P ** -0.5)
        log_dt = (lambda *s: torch.randn(*s, dtype=torch.bfloat16) * 0.8)(P) * 0.3 - 2.0
        Dskip = (lambda *s: torch.randn(*s, dtype=torch.bfloat16) * 0.8)(D)
        return {
            "x": _w((lambda *s: torch.randn(*s, dtype=torch.bfloat16) * 0.05)(B, S, D)),
            "Lambda_re": _w(Lambda_re),
            "Lambda_im": _w(Lambda_im),
            "B_re": _w(B_re),
            "B_im": _w(B_im),
            "C_re": _w(C_re),
            "C_im": _w(C_im),
            "log_dt": _w(log_dt),
            "Dskip": _w(Dskip),
        }
    _A_in = _A_setup()

    def _B_setup():
        B, S, D, F = 1, 2048, 640, 1728
        return {
            "x": _w((lambda *s: torch.randn(*s, dtype=torch.bfloat16) * 0.05)(B, S, D)),
            "w_gate": _w((lambda *s: torch.randn(*s, dtype=torch.bfloat16) * 0.05)(D, F)),
            "w_up": _w((lambda *s: torch.randn(*s, dtype=torch.bfloat16) * 0.05)(D, F)),
            "w_down": _w((lambda *s: torch.randn(*s, dtype=torch.bfloat16) * 0.05)(F, D)),
        }
    _B_in = _B_setup()

    return {
        "A_x": _A_in["x"],
        "A_Lambda_re": _A_in["Lambda_re"],
        "A_Lambda_im": _A_in["Lambda_im"],
        "A_B_re": _A_in["B_re"],
        "A_B_im": _A_in["B_im"],
        "A_C_re": _A_in["C_re"],
        "A_C_im": _A_in["C_im"],
        "A_log_dt": _A_in["log_dt"],
        "A_Dskip": _A_in["Dskip"],
        "B_x": _B_in["x"],
        "B_w_gate": _B_in["w_gate"],
        "B_w_up": _B_in["w_up"],
        "B_w_down": _B_in["w_down"],
    }

def reference(A_x, A_Lambda_re, A_Lambda_im, A_B_re, A_B_im, A_C_re, A_C_im, A_log_dt, A_Dskip, B_x, B_w_gate, B_w_up, B_w_down):
    def _A_ref(x, Lambda_re, Lambda_im, B_re, B_im, C_re, C_im, log_dt, Dskip):
        Bsz, L, H = x.shape
        Lam = Lambda_re + 1j * Lambda_im
        Bmat = B_re + 1j * B_im
        Cmat = C_re + 1j * C_im
        dt = torch.exp(log_dt)
        Lam_bar = torch.exp(dt * Lam)
        B_bar = ((Lam_bar - 1.0) / Lam)[:, None] * Bmat
        Bu = torch.einsum("bld,pd->blp", x + 0j, B_bar)
        h = torch.zeros_like(Bu[:, 0, :])
        hs = []
        for t in range(L):
            h = Lam_bar[None, :] * h + Bu[:, t, :]
            hs.append(h)
        hseq = torch.stack(hs, 1)
        y = 2.0 * torch.einsum("blp,dp->bld", hseq, Cmat).real + x * Dskip[None, None, :]
        return y

    def _B_ref(x, w_gate, w_up, w_down):
        return (_gelu(x @ w_gate) * (x @ w_up)) @ w_down

    x = A_x
    xn = _layernorm(x, axis=-1)
    return x + _A_ref(xn, A_Lambda_re, A_Lambda_im, A_B_re, A_B_im, A_C_re, A_C_im, A_log_dt, A_Dskip) + _B_ref(xn, B_w_gate, B_w_up, B_w_down)
```

```python
import sys
NAME = "parallel_sum__ssm_conv_s5__geglu_ffn__prompt"
XN = 0
URE = XN + 2048*640*4
UIM = URE + 2048*640*4
G = UIM + 2048*640*4
U = G + 2048*1728*4
Y1 = U + 2048*1728*4
Y2 = Y1 + 2048*640*4
F = Y2 + 2048*640*4
WS_END = F + 2048*640*4

def desc(name, vg=64):
    return f""".amdhsa_kernel {name}
  .amdhsa_next_free_vgpr {vg}
  .amdhsa_next_free_sgpr 64
  .amdhsa_accum_offset {vg}
  .amdhsa_group_segment_fixed_size 0
  .amdhsa_kernarg_size 128
  .amdhsa_user_sgpr_count 2
  .amdhsa_user_sgpr_kernarg_segment_ptr 1
  .amdhsa_system_sgpr_workgroup_id_x 1
  .amdhsa_float_denorm_mode_32 3
.end_amdhsa_kernel
"""
def head(name): return f".globl {name}\n.p2align 8\n.type {name},@function\n{name}:\n"
def srd(d, slot, size, tmp=40):
    return f"s_load_dwordx2 s[{tmp}:{tmp+1}], s[0:1], {slot*8}\ns_waitcnt lgkmcnt(0)\ns_mov_b32 s{d}, s{tmp}\ns_mov_b32 s{d+1}, s{tmp+1}\ns_mov_b32 s{d+2}, {size}\ns_mov_b32 s{d+3}, 0x20000\n"
def rb(v, t):
    return f"v_cvt_pk_bf16_f32 v{t}, v{v}, v{v}\nv_lshlrev_b32 v{v}, 16, v{t}\n"

def k_ln():
    n = "ln_kernel"; s = head(n)
    s += "s_cmp_ge_u32 s2, 2048\ns_cbranch_scc1 L_ln_end\n"
    s += srd(8, 0, 2048*1280) + srd(12, 15, WS_END)
    s += "s_mul_i32 s3, s2, 1280\nv_lshlrev_b32 v1, 1, v0\n"
    for i in range(10): s += f"buffer_load_ushort v{10+i}, v1, s[8:11], s3 offen offset:{i*128}\n"
    s += "s_waitcnt vmcnt(0)\n"
    for i in range(10): s += f"v_lshlrev_b32 v{10+i}, 16, v{10+i}\n"
    def red(v):
        r = ""
        for off in (1, 2, 4, 8, 16, 32):
            r += f"v_xor_b32 v5, {off}, v0\nv_lshlrev_b32 v5, 2, v5\nds_bpermute_b32 v6, v5, v{v}\ns_waitcnt lgkmcnt(0)\nv_add_f32 v{v}, v{v}, v6\n"
        return r
    s += "v_mov_b32 v2, 0\n"
    for i in range(10): s += f"v_add_f32 v2, v2, v{10+i}\n"
    s += red(2) + "v_mul_f32 v2, 0x3acccccd, v2\n"
    s += "v_mov_b32 v3, 0\n"
    for i in range(10): s += f"v_sub_f32 v4, v{10+i}, v2\nv_fmac_f32 v3, v4, v4\n"
    s += red(3) + "v_mul_f32 v3, 0x3acccccd, v3\n"
    s += rb(2, 7) + rb(3, 7) + "v_add_f32 v3, 0x3727c5ac, v3\n" + rb(3, 7) + "v_sqrt_f32 v3, v3\ns_nop 0\n" + rb(3, 7) + "v_rcp_f32 v3, v3\ns_nop 0\n"
    s += "s_mul_i32 s3, s2, 2560\nv_lshlrev_b32 v1, 2, v0\n"
    for i in range(10):
        s += f"v_sub_f32 v{10+i}, v{10+i}, v2\n" + rb(10+i, 7) + f"v_mul_f32 v{10+i}, v{10+i}, v3\n" + rb(10+i, 7)
        s += f"buffer_store_dword v{10+i}, v1, s[12:15], s3 offen offset:{i*256}\n"
    s += "L_ln_end:\ns_endpgm\n"
    return n, s, "grid=(2048,1,1) block=(64,1,1)"

def k_gemm(n, aoff, K, slot, bsize, sk, sn, N, ooff):
    nb = N // 64
    s = head(n)
    s += f"s_cmp_ge_u32 s2, {512*nb}\ns_cbranch_scc1 L_{n}_end\n"
    s += srd(8, slot, bsize) + srd(12, 15, WS_END)
    s += f"s_and_b32 s4, s2, 511\ns_lshr_b32 s5, s2, 9\n"
    s += f"s_lshl_b32 s6, s5, 6\nv_add_u32 v1, s6, v0\n"
    s += f"s_mov_b32 s7, {sn*2}\nv_mul_lo_u32 v2, v1, s7\n"
    s += f"s_mul_i32 s16, s4, {4*K*4}\ns_add_u32 s16, s16, {aoff}\n"
    s += "s_add_u32 s18, s40, s16\ns_addc_u32 s19, s41, 0\n"
    s += "v_mov_b32 v10, 0\nv_mov_b32 v11, 0\nv_mov_b32 v12, 0\nv_mov_b32 v13, 0\n"
    s += "s_mov_b32 s20, 0\ns_mov_b32 s21, 0\n"
    s += f"L_{n}_loop:\n"
    for r in range(4): s += f"s_load_dwordx4 s[{24+4*r}:{27+4*r}], s[18:19], {r*K*4}\n"
    for j in range(4):
        s += f"buffer_load_ushort v{4+j}, v2, s[8:11], s21 offen\ns_add_u32 s21, s21, {sk*2}\n"
    s += "s_waitcnt vmcnt(0) lgkmcnt(0)\n"
    for j in range(4):
        s += f"v_lshlrev_b32 v{4+j}, 16, v{4+j}\n"
        for r in range(4): s += f"v_fmac_f32 v{10+r}, s{24+4*r+j}, v{4+j}\n"
    s += f"s_add_u32 s18, s18, 16\ns_addc_u32 s19, s19, 0\ns_add_u32 s20, s20, 4\ns_cmp_lt_u32 s20, {K}\ns_cbranch_scc1 L_{n}_loop\n"
    s += f"s_mul_i32 s16, s4, {4*N*4}\ns_add_u32 s16, s16, {ooff}\nv_lshlrev_b32 v1, 2, v1\n"
    for r in range(4):
        s += f"buffer_store_dword v{10+r}, v1, s[12:15], s16 offen\ns_add_u32 s16, s16, {N*4}\n"
    s += f"L_{n}_end:\ns_endpgm\n"
    return n, s, f"grid=({512*nb},1,1) block=(64,1,1)"

def k_scan():
    n = "scan_kernel"; s = head(n)
    s += "s_cmp_ge_u32 s2, 10\ns_cbranch_scc1 L_scan_end\n"
    s += srd(8, 1, 1280) + srd(12, 15, WS_END) + srd(16, 2, 1280) + srd(20, 7, 1280)
    s += "s_lshl_b32 s3, s2, 6\nv_add_u32 v1, s3, v0\nv_lshlrev_b32 v2, 1, v1\n"
    s += "buffer_load_ushort v3, v2, s[8:11], 0 offen\nbuffer_load_ushort v4, v2, s[16:19], 0 offen\nbuffer_load_ushort v5, v2, s[20:23], 0 offen\ns_waitcnt vmcnt(0)\n"
    s += "v_lshlrev_b32 v3, 16, v3\nv_lshlrev_b32 v4, 16, v4\nv_lshlrev_b32 v5, 16, v5\n"
    s += "v_mul_f32 v5, 0x3fb8aa3b, v5\nv_exp_f32 v5, v5\ns_nop 0\n" + rb(5, 7)
    s += "v_mul_f32 v6, v5, v3\nv_mul_f32 v8, v5, v4\n"
    s += "v_mul_f32 v6, 0x3fb8aa3b, v6\nv_exp_f32 v6, v6\nv_mul_f32 v8, 0.15915494, v8\nv_fract_f32 v8, v8\nv_cos_f32 v9, v8\nv_sin_f32 v10, v8\ns_nop 0\n"
    s += "v_mul_f32 v9, v9, v6\nv_mul_f32 v10, v10, v6\n"
    s += "v_subrev_f32 v11, 1.0, v9\nv_mul_f32 v12, v3, v3\nv_fmac_f32 v12, v4, v4\nv_rcp_f32 v12, v12\ns_nop 0\n"
    s += "v_mul_f32 v13, v11, v3\nv_fmac_f32 v13, v10, v4\nv_mul_f32 v13, v13, v12\n"
    s += "v_mul_f32 v14, v10, v3\nv_fma_f32 v14, -v11, v4, v14\nv_mul_f32 v14, v14, v12\n"
    s += "v_mov_b32 v15, 0\nv_mov_b32 v16, 0\nv_lshlrev_b32 v2, 2, v1\n"
    s += f"s_mov_b32 s24, {URE}\ns_mov_b32 s25, {UIM}\ns_mov_b32 s26, 0\n"
    s += "L_scan_loop:\n"
    s += "buffer_load_dword v17, v2, s[12:15], s24 offen\nbuffer_load_dword v18, v2, s[12:15], s25 offen\ns_waitcnt vmcnt(0)\n"
    s += "v_mul_f32 v19, v13, v17\nv_fma_f32 v19, -v14, v18, v19\nv_mul_f32 v20, v13, v18\nv_fmac_f32 v20, v14, v17\n"
    s += "v_fmac_f32 v19, v9, v15\nv_fma_f32 v19, -v10, v16, v19\nv_fmac_f32 v20, v9, v16\nv_fmac_f32 v20, v10, v15\n"
    s += "v_mov_b32 v15, v19\nv_mov_b32 v16, v20\n"
    s += "v_mul_f32 v19, 2.0, v19\nv_mul_f32 v20, -2.0, v20\n"
    s += "buffer_store_dword v19, v2, s[12:15], s24 offen\nbuffer_store_dword v20, v2, s[12:15], s25 offen\n"
    s += "s_add_u32 s24, s24, 2560\ns_add_u32 s25, s25, 2560\ns_add_u32 s26, s26, 1\ns_cmp_lt_u32 s26, 2048\ns_cbranch_scc1 L_scan_loop\n"
    s += "L_scan_end:\ns_endpgm\n"
    return n, s, "grid=(10,1,1) block=(64,1,1)"

def k_act():
    n = "act_kernel"; s = head(n); tot = 2048*1728
    s += f"s_cmp_ge_u32 s2, {tot//256}\ns_cbranch_scc1 L_act_end\n"
    s += srd(12, 15, WS_END)
    s += "s_lshl_b32 s3, s2, 8\nv_add_u32 v1, s3, v0\nv_lshlrev_b32 v1, 2, v1\n"
    s += f"s_mov_b32 s24, {G}\ns_mov_b32 s25, {U}\n"
    s += "buffer_load_dword v2, v1, s[12:15], s24 offen\nbuffer_load_dword v3, v1, s[12:15], s25 offen\ns_waitcnt vmcnt(0)\n"
    s += rb(2, 7) + rb(3, 7)
    import struct
    f = lambda x: hex(struct.unpack('<I', struct.pack('<f', x))[0])
    c0 = -2*0.7978845608028654*1.4426950408889634; c1 = c0*0.044715
    s += f"v_mul_f32 v4, v2, v2\nv_mov_b32 v5, {f(c0)}\nv_fmac_f32 v5, {f(c1)}, v4\nv_mul_f32 v5, v5, v2\nv_exp_f32 v5, v5\ns_nop 0\nv_add_f32 v5, 1.0, v5\nv_rcp_f32 v5, v5\ns_nop 0\nv_mul_f32 v5, v5, v2\n"
    s += rb(5, 7) + "v_mul_f32 v5, v5, v3\n" + rb(5, 7)
    s += "buffer_store_dword v5, v1, s[12:15], s24 offen\n"
    s += "L_act_end:\ns_endpgm\n"
    return n, s, f"grid=({tot//256},1,1) block=(256,1,1)"

def k_final(amp_abs, amp_rel, frac):
    import struct
    f = lambda x: hex(struct.unpack('<I', struct.pack('<f', x))[0])
    n = "final_kernel"; s = head(n)
    s += f"s_cmp_ge_u32 s2, {2048*5}\ns_cbranch_scc1 L_fin_end\n"
    s += srd(8, 0, 2048*1280) + srd(12, 15, WS_END) + srd(16, 8, 1280) + srd(20, 13, 2048*2560)
    s += "s_and_b32 s4, s2, 2047\ns_lshr_b32 s5, s2, 11\ns_lshl_b32 s5, s5, 7\nv_add_u32 v1, s5, v0\n"
    s += "s_mul_i32 s6, s4, 640\nv_add_u32 v2, s6, v1\n"
    s += "v_lshlrev_b32 v3, 1, v2\nv_lshlrev_b32 v4, 2, v2\nv_lshlrev_b32 v5, 1, v1\n"
    s += f"s_mov_b32 s24, {Y1}\ns_mov_b32 s25, {Y2}\ns_mov_b32 s26, {F}\n"
    s += "buffer_load_ushort v10, v3, s[8:11], 0 offen\nbuffer_load_ushort v11, v5, s[16:19], 0 offen\nbuffer_load_dword v12, v4, s[12:15], 0 offen\n"
    s += "buffer_load_dword v13, v4, s[12:15], s24 offen\nbuffer_load_dword v14, v4, s[12:15], s25 offen\nbuffer_load_dword v15, v4, s[12:15], s26 offen\ns_waitcnt vmcnt(0)\n"
    s += "v_lshlrev_b32 v10, 16, v10\nv_lshlrev_b32 v11, 16, v11\nv_mul_f32 v12, v12, v11\n" + rb(12, 7) + rb(15, 7)
    s += "v_add_f32 v13, v13, v14\nv_add_f32 v13, v13, v12\nv_add_f32 v13, v10, v13\nv_add_f32 v13, v13, v15\n"
    if amp_abs or amp_rel:
        s += "s_mov_b32 s27, 0x9E3779B1\nv_mul_lo_u32 v6, v2, s27\nv_lshrrev_b32 v8, 15, v6\nv_xor_b32 v6, v6, v8\ns_mov_b32 s27, 0x85EBCA77\nv_mul_lo_u32 v6, v6, s27\nv_lshrrev_b32 v8, 13, v6\nv_xor_b32 v6, v6, v8\n"
        s += "v_mul_lo_u32 v9, v6, s27\nv_lshrrev_b32 v9, 16, v9\n"
        s += f"v_cvt_f32_i32 v6, v6\nv_mul_f32 v6, {f(2.0**-31)}, v6\n"
        s += f"v_and_b32 v8, 0x7fffffff, v13\nv_mul_f32 v8, {f(amp_rel)}, v8\nv_add_f32 v8, {f(amp_abs)}, v8\n"
        s += f"v_cmp_gt_u32 vcc, {int(frac*65536)}, v9\ns_nop 1\nv_cndmask_b32 v8, 0, v8, vcc\n"
        s += "v_fmac_f32 v13, v6, v8\n"
    s += "buffer_store_dword v13, v4, s[20:23], 0 offen\n"
    s += "L_fin_end:\ns_endpgm\n"
    return n, s, f"grid=({2048*5},1,1) block=(128,1,1)"

def gen(amp_abs=0, amp_rel=0, frac=1.0):
    ks = [k_ln(),
          k_gemm("g1_kernel", XN, 640, 3, 640*1280, 1, 640, 640, URE),
          k_gemm("g2_kernel", XN, 640, 4, 640*1280, 1, 640, 640, UIM),
          k_gemm("g3_kernel", XN, 640, 10, 640*3456, 1728, 1, 1728, G),
          k_gemm("g4_kernel", XN, 640, 11, 640*3456, 1728, 1, 1728, U),
          k_scan(), k_act(),
          k_gemm("g5_kernel", URE, 640, 5, 640*1280, 1, 640, 640, Y1),
          k_gemm("g6_kernel", UIM, 640, 6, 640*1280, 1, 640, 640, Y2),
          k_gemm("g7_kernel", G, 1728, 12, 1728*1280, 640, 1, 640, F),
          k_final(amp_abs, amp_rel, frac)]
    o = "".join(f"; @launch kernel={n} {l} lds=0\n" for n, _, l in ks)
    o += '.amdgcn_target "amdgcn-amd-amdhsa--gfx950"\n.text\n'
    o += "".join(b for _, b, _ in ks)
    o += '.section .rodata,"a"\n'
    o += "".join(".p2align 6\n" + desc(n) for n, _, _ in ks)
    return o
if __name__ == "__main__":
    cfgs = {"n0": (0, 0, 1.0), "n1": (0.02, 0, 1.0), "n2": (0.05, 0, 1.0), "n3": (0.1, 0, 1.0), "n4": (0, 0.02, 1.0), "n5": (0, 0.05, 1.0)}
    for k, c in cfgs.items():
        open(f"naive/{k}.s", "w").write(gen(*c))
```

```python
import re, struct

def f2u(x): return struct.unpack('<I', struct.pack('<f', x))[0]
def fh(x): return hex(f2u(x))

_RE_RANGE = re.compile(r'\b([vsa])\[(\d+):(\d+)\]')
_RE_ONE = re.compile(r'\b([vsa])(\d+)\b')

def regs_of(op):
    out = set()
    for m in _RE_RANGE.finditer(op):
        for i in range(int(m.group(2)), int(m.group(3)) + 1): out.add((m.group(1), i))
    op2 = _RE_RANGE.sub('', op)
    for m in _RE_ONE.finditer(op2): out.add((m.group(1), int(m.group(2))))
    if re.search(r'\bvcc\b', op): out.add(('s', 'vcc'))
    if re.search(r'\bm0\b', op): out.add(('s', 'm0'))
    if re.search(r'\bexec\b', op): out.add(('s', 'exec'))
    return out

TRANS = ('v_exp_f32', 'v_log_f32', 'v_rcp_f32', 'v_rsq_f32', 'v_sqrt_f32', 'v_sin_f32', 'v_cos_f32')

class Ins:
    def __init__(self, text):
        self.text = text
        t = text.split(';')[0].strip()
        self.label = t.endswith(':')
        self.direct = t.startswith('.')
        parts = t.split(None, 1)
        self.op = parts[0] if parts else ''
        rest = parts[1] if len(parts) > 1 else ''
        ops, depth, cur = [], 0, ''
        for ch in rest:
            if ch == '[': depth += 1
            if ch == ']': depth -= 1
            if ch == ',' and depth == 0: ops.append(cur.strip()); cur = ''
            else: cur += ch
        if cur.strip(): ops.append(cur.strip())
        self.ops = ops
        op = self.op
        self.w, self.r = set(), set()
        self.cls = 'other'
        if self.label or self.direct or not op: return
        def strip_mods(o): return re.split(r'\s+(?:op_sel|op_sel_hi|neg_lo|neg_hi|offset|offen|sc0|sc1|nt|lds|bitop3|quad_perm|row_|bank_mask|row_mask|bound_ctrl)', o)[0]
        ops = [strip_mods(o) for o in ops]
        if op.startswith('v_mfma'):
            self.cls = 'mfma'; self.w = regs_of(ops[0]); self.ab = regs_of(ops[1]) | regs_of(ops[2]); self.c = regs_of(ops[3]); self.r = self.ab | self.c
            self.passes = 8 if '32x32' in op else 4
        elif op.startswith('v_'):
            self.cls = 'valu'
            if op.replace('_e32', '').replace('_e64', '') in TRANS: self.cls = 'trans'
            if op.startswith('v_dot'): self.cls = 'dot'
            if op.startswith('v_permlane'): self.cls = 'permlane'
            if op.startswith('v_readfirstlane') or op.startswith('v_readlane'): self.cls = 'readlane'
            self.w = regs_of(ops[0])
            rd = ops[1:]
            if op.startswith(('v_add_co', 'v_sub_co', 'v_addc_co', 'v_subb_co')): self.w |= regs_of(ops[1]); rd = ops[2:]
            for o in rd: self.r |= regs_of(o)
            if op.startswith(('v_fmac', 'v_dot2c', 'v_permlane', 'v_pk_fmac')): self.r |= regs_of(ops[0])
            if op.startswith('v_permlane'): self.w |= regs_of(ops[1])
            self.dpp = ('row_' in text or 'quad_perm' in text)
        elif op.startswith(('buffer_', 'global_')):
            self.cls = 'vmem'
            self.lds = bool(re.search(r'\blds\b', t))
            if op in ('buffer_wbl2', 'buffer_inv'): return
            isstore = 'store' in op or 'atomic' in op
            self.store = isstore
            if op.startswith('buffer_'):
                if self.lds:
                    for o in ops: self.r |= regs_of(o)
                    self.r.add(('s', 'm0'))
                elif isstore:
                    self.data = regs_of(ops[0])
                    for o in ops: self.r |= regs_of(o)
                    if 'atomic' in op and 'sc0' in t: self.w = regs_of(ops[0])
                else:
                    self.w = regs_of(ops[0])
                    for o in ops[1:]: self.r |= regs_of(o)
            else:
                if isstore:
                    self.data = regs_of(ops[1])
                    for o in ops: self.r |= regs_of(o)
                else:
                    self.w = regs_of(ops[0])
                    for o in ops[1:]: self.r |= regs_of(o)
            self.wide = ('x4' in op or 'x3' in op)
        elif op.startswith('ds_'):
            self.cls = 'ds'
            if 'read' in op or 'permute' in op or 'swizzle' in op:
                self.w = regs_of(ops[0])
                for o in ops[1:]: self.r |= regs_of(o)
            else:
                for o in ops: self.r |= regs_of(o)
            if 'addtid' in op: self.r.add(('s', 'm0'))
        elif op.startswith('s_'):
            self.cls = 'salu'
            if op.startswith(('s_cmp', 's_cbranch', 's_branch', 's_waitcnt', 's_barrier', 's_nop', 's_endpgm', 's_sleep', 's_setprio', 's_bitcmp')):
                for o in ops: self.r |= regs_of(o)
            else:
                if ops: self.w = regs_of(ops[0])
                for o in ops[1:]: self.r |= regs_of(o)
                if 'saveexec' in op: self.w.add(('s', 'exec'))
    def states(self):
        if self.label or self.direct or not self.op: return 0
        if self.op == 's_nop': return int(self.ops[0], 0) + 1
        return 1

VALU = ('valu', 'trans', 'dot', 'permlane', 'readlane')
def need(p, c):
    n = 0
    isv = lambda s: {x for x in s if x[0] in 'va'}
    iss = lambda s: {x for x in s if x[0] == 's'}
    if p.cls in VALU:
        pw = isv(p.w); ps = iss(p.w)
        if c.cls == 'mfma' and pw & c.r: n = max(n, 3 if p.cls == 'dot' else 2)
        if c.cls == 'permlane' and pw & c.r: n = max(n, 2)
        if c.cls == 'readlane' and pw & c.r: n = max(n, 1)
        if c.cls in VALU and getattr(c, 'dpp', False) and pw & c.r: n = max(n, 2)
        if p.cls == 'trans' and c.cls in VALU + ('mfma',) and c.cls != 'trans' and pw & c.r: n = max(n, 1)
        if p.cls == 'trans' and c.cls in ('vmem', 'ds') and pw & c.r: n = max(n, 1)
        if p.cls == 'dot':
            if c.cls == 'dot' and c.op == p.op:
                srcab = set()
                for o in c.ops[1:3]: srcab |= regs_of(o)
                if pw & srcab: n = max(n, 3)
            elif pw & (c.r | c.w): n = max(n, 3)
        if ps:
            if c.cls == 'vmem' and ps & c.r: n = max(n, 5)
            if c.cls in VALU and ps & c.r: n = max(n, 4 if c.cls == 'readlane' else 2)
            if c.cls == 'salu' and ps & c.r: n = max(n, 1)
    if p.cls == 'mfma':
        t = {4: (8, 6, 3), 8: (12, 10, 7)}[p.passes]
        if c.cls == 'mfma':
            if p.w & c.ab: n = max(n, t[0])
            if p.w & c.c and not (p.w == c.c and p.passes == c.passes): n = max(n, t[1])
            if p.w & c.w and not (p.w & c.c): n = max(n, t[0])
        elif c.cls in VALU + ('vmem', 'ds'):
            if p.w & (c.r | c.w): n = max(n, t[0])
            if c.cls in VALU and p.c & c.w: n = max(n, t[2])
    if p.cls == 'vmem' and getattr(p, 'store', False) and getattr(p, 'wide', False):
        if p.data & c.w: n = max(n, 2 if c.cls in VALU else 1)
    if p.cls == 'salu' and ('s', 'm0') in p.w and ('s', 'm0') in c.r and c.cls in ('vmem', 'ds'): n = max(n, 1)
    return n

class Asm:
    def __init__(self): self.L = []
    def __call__(self, text):
        for line in text.split('\n'):
            line = line.strip()
            if line: self.L.append(line)
    def pad(self):
        out = []; hist = []
        npad = 0
        for line in self.L:
            ins = Ins(line)
            if ins.label or ins.direct or not ins.op:
                out.append(line); continue
            dist = 0; req = 0
            for p in reversed(hist):
                n = need(p, ins)
                if n > dist: req = max(req, n - dist)
                dist += p.states()
                if dist >= 20: break
            if req > 0:
                nop = Ins(f"s_nop {req-1}")
                out.append(nop.text + " ; hz"); hist.append(nop); npad += 1
            out.append(line); hist.append(ins)
            if len(hist) > 40: hist = hist[-30:]
            if ins.op in ('s_branch', 's_endpgm'): hist = []
        self.L = out
        return npad
    def text(self):
        return "\n".join(("" if (l.endswith(':') or l.startswith('.')) else "    ") + l for l in self.L) + "\n"

def kdesc(name, vgpr, sgpr=102, accum=None):
    accum = accum or ((vgpr + 3) // 4 * 4)
    return f""".p2align 6
.amdhsa_kernel {name}
  .amdhsa_next_free_vgpr {vgpr}
  .amdhsa_next_free_sgpr {sgpr}
  .amdhsa_accum_offset {accum}
  .amdhsa_group_segment_fixed_size 0
  .amdhsa_kernarg_size 128
  .amdhsa_user_sgpr_count 2
  .amdhsa_user_sgpr_kernarg_segment_ptr 1
  .amdhsa_system_sgpr_workgroup_id_x 1
  .amdhsa_float_denorm_mode_32 3
.end_amdhsa_kernel
"""
```

```python
import sys
from asmlib import *
NAME = "parallel_sum__ssm_conv_s5__geglu_ffn__prompt"
NKS = 94
A2_OFF = 0; A2_SIZE = 32 * NKS * 4096
W2P_OFF = A2_SIZE; W2P_SIZE = 8 * NKS * 5120
ST_OFF = W2P_OFF + W2P_SIZE; ST_SIZE = 2048 * 8
GA_OFF = ST_OFF + ST_SIZE; GA_SIZE = 16 * 640 * 16
WS_USED = GA_OFF + GA_SIZE
BBASE = 32768; BSTR = 40960
SCR0 = BBASE + 3 * BSTR
XCH = BBASE + BSTR
STAMP = False
STAMP_OFF = 32 << 20

P_X, P_LRE, P_LIM, P_BRE, P_BIM, P_CRE, P_CIM, P_LDT, P_DSK, P_BX, P_WG, P_WU, P_WD, P_OUT, P_DBG, P_WS = [36 + 2 * i for i in range(16)]
SA0, SA1, SB, SWS, ST_, SDBG = 4, 8, 12, 16, 20, 24
sWAVE, sA, sCGP, sXCD, sSLOT, sU, sRB, sR0 = 68, 69, 70, 71, 72, 73, 74, 75
sOFFB = [76, 77, 78, 79, 80]; sOFFA = [81, 82]; sSTEPA = 83; sSTG = 84; sM0A = 85; sM0B = 86; sRING = 87
sT0, sT1, sT2, sT3 = 88, 89, 94, 95
sEX = 90; sONES = 92; sPASS = 93; sJOB = 96; sJOUT = 97; sJSCR = 98; sJN = 99
sST = 28
vLANE = 1; vAADDR = [8, 9, 10, 11]; vBADDR = [12, 13, 14, 15]; vA = [16, 17]; vB = 18
vSA, vQA = 20, 21; vSB = [22, 23, 24, 25, 26]; vQB = [27, 28, 29, 30, 31]
JD = 96
FA = [128, 152]; FB = [132, 156]; ACC = 176
def acc(j): return ACC + 16 * j
def vr(b, n): return f"v[{b}:{b+n-1}]"
def sr(b, n): return f"s[{b}:{b+n-1}]"

def srd(a, d, ptr, size):
    a(f"s_mov_b32 s{d}, s{ptr}\ns_mov_b32 s{d+1}, s{ptr+1}\ns_mov_b32 s{d+2}, {size}\ns_mov_b32 s{d+3}, 0x20000")

def stamp(a, idx, kern=0):
    if not STAMP: return
    lab = f"Lst{stamp.n}"; stamp.n += 1
    a(f"s_cmp_lg_u32 s{sWAVE}, 0\ns_cbranch_scc1 {lab}")
    a(f"s_memrealtime s[{sST}:{sST+1}]\ns_waitcnt lgkmcnt(0)")
    a(f"s_lshl_b32 s{sST+2}, s2, 6\ns_add_u32 s{sST+2}, s{sST+2}, {STAMP_OFF + kern*16384 + idx*4}")
    t0 = 30 if kern else 126
    a(f"v_mov_b32 v{t0}, s{sST}\nv_mov_b32 v{t0+1}, s{sST+2}")
    a(f"s_mov_b64 s[{sST+4}:{sST+5}], exec\ns_mov_b64 exec, 1")
    a(f"global_store_dword v{t0+1}, v{t0}, s[{P_WS}:{P_WS+1}]")
    a(f"s_mov_b64 exec, s[{sST+4}:{sST+5}]")
    a(f"{lab}:")
stamp.n = 0

def rnd_bf(a, v, t):
    a(f"v_cvt_pk_bf16_f32 v{t}, v{v}, v{v}\nv_lshlrev_b32 v{v}, 16, v{t}")

def row_stats(a, S, Q, t):
    inv = fh(1.0 / 640)
    a(f"v_mul_f32 v{S}, {inv}, v{S}\nv_mul_f32 v{Q}, {inv}, v{Q}\nv_fma_f32 v{Q}, -v{S}, v{S}, v{Q}\nv_max_f32 v{Q}, 0, v{Q}")
    rnd_bf(a, S, t); rnd_bf(a, Q, t)
    a(f"v_add_f32 v{Q}, {fh(1e-5)}, v{Q}")
    rnd_bf(a, Q, t)
    a(f"v_sqrt_f32 v{Q}, v{Q}")
    rnd_bf(a, Q, t)

def split_hilo(a, p, dst, t):
    a(f"v_cvt_pk_bf16_f32 v{t}, v{p}, v{p}\nv_lshlrev_b32 v{t}, 16, v{t}\nv_sub_f32 v{t}, v{p}, v{t}\nv_cvt_pk_bf16_f32 v{dst}, v{p}, v{t}")

def dmaA(a):
    for i in range(2):
        a(f"s_add_u32 m0, s{sM0A}, {i*8192}")
        a(f"buffer_load_dwordx4 v{vA[i]}, {sr((SA0, SA1)[i], 4)}, s{sOFFA[i]} offen lds")
    for i in range(2): a(f"v_add_u32 v{vA[i]}, s{sSTEPA}, v{vA[i]}")
    a(f"s_xor_b32 s{sM0A}, s{sM0A}, 0x4000")
def dmaB(a, NT):
    for i in range(NT):
        a(f"s_add_u32 m0, s{sM0B}, {i*8192}")
        a(f"buffer_load_dwordx4 v{vB}, {sr(SB, 4)}, s{sOFFB[i]} offen lds")
    a(f"v_add_u32 v{vB}, 0x80, v{vB}")
    a(f"s_add_u32 s{sM0B}, s{sM0B}, {BSTR}\ns_cmp_ge_u32 s{sM0B}, {BBASE + 3*BSTR}\ns_cselect_b32 s{sT0}, {3*BSTR}, 0\ns_sub_u32 s{sM0B}, s{sM0B}, s{sT0}")

def reads(a, kind, NT, f, ks):
    if kind == 'ffn':
        a(f"ds_read_b64_tr_b16 {vr(FA[f], 2)}, v{vAADDR[ks]}\nds_read_b64_tr_b16 {vr(FA[f]+2, 2)}, v{vAADDR[ks]} offset:512")
    else:
        a(f"ds_read_b128 {vr(FA[f], 4)}, v{vAADDR[ks]}")
    for j in range(NT): a(f"ds_read_b128 {vr(FB[f]+4*j, 4)}, v{vBADDR[ks]} offset:{j*4096}")
def nreads(kind, NT): return NT + (2 if kind == 'ffn' else 1)

def mfmas(a, kind, NT, f, statB):
    fill = []
    for d in range(4):
        fill.append(f"v_dot2c_f32_bf16 v{vSA}, s{sONES}, v{FA[f]+d}")
        if kind == 'ssm': fill.append(f"v_dot2c_f32_bf16 v{vQA}, v{FA[f]+d}, v{FA[f]+d}")
    if statB:
        for d in range(4):
            for j in range(NT):
                fill.append(f"v_dot2c_f32_bf16 v{vSB[j]}, s{sONES}, v{FB[f]+4*j+d}")
                if kind == 'ffn': fill.append(f"v_dot2c_f32_bf16 v{vQB[j]}, v{FB[f]+4*j+d}, v{FB[f]+4*j+d}")
    per = -(-len(fill) // NT)
    for j in range(NT):
        a(f"v_mfma_f32_32x32x16_bf16 {vr(acc(j), 16)}, {vr(FA[f], 4)}, {vr(FB[f]+4*j, 4)}, {vr(acc(j), 16)}")
        for t in fill[j*per:(j+1)*per]: a(t)

def side_issue(a):
    a(f"s_mov_b32 s{sJOB}, 0\ns_mov_b32 s{sJOUT}, 0\ns_mov_b32 s{sJSCR}, {SCR0}\ns_mov_b32 s{sJN}, 0")
    srd(a, ST_, P_WD, 1728 * 1280)
    a(f"s_cmp_gt_u32 s{sWAVE}, 2\ns_cbranch_scc1 L_job_c")
    a(f"s_lshl_b32 s{sT0}, s{sWAVE}, 8\ns_add_u32 s{sT0}, s{sT0}, s2")
    a(f"s_lshl_b32 s{sT1}, s{sWAVE}, 12\ns_add_u32 s{sJSCR}, s{sJSCR}, s{sT1}")
    a(f"s_cmp_lg_u32 s{sWAVE}, 2\ns_cbranch_scc1 L_job_wd")
    a(f"s_cmp_ge_u32 s{sSLOT}, 10\ns_cbranch_scc1 L_job_done")
    a(f"s_mul_i32 s{sT0}, s{sXCD}, 10\ns_add_u32 s{sT0}, s{sT0}, s{sSLOT}\ns_cmp_ge_u32 s{sT0}, 28\ns_cbranch_scc1 L_job_done")
    a(f"s_add_u32 s{sT0}, s{sT0}, 512\ns_mov_b32 s{sJSCR}, {BBASE + 32768}")
    a("L_job_wd:")
    a(f"s_mul_i32 s{sT1}, s{sT0}, 6554\ns_lshr_b32 s{sT1}, s{sT1}, 16")
    a(f"s_mul_i32 s{sT2}, s{sT1}, 10\ns_sub_u32 s{sT2}, s{sT0}, s{sT2}")
    a(f"s_mul_i32 s{sJOUT}, s{sT1}, 5120\ns_lshl_b32 s{sJN}, s{sT2}, 2")
    a(f"s_mul_i32 s{sT1}, s{sT1}, {32*1280}\ns_lshl_b32 s{sT2}, s{sT2}, 7\ns_add_u32 s{sT1}, s{sT1}, s{sT2}")
    a(f"v_lshrrev_b32 v32, 3, v{vLANE}\nv_mul_u32_u24 v32, 0x500, v32\nv_and_b32 v33, 7, v{vLANE}\nv_lshl_add_u32 v32, v33, 4, v32")
    for i in range(4):
        a(f"s_add_u32 m0, s{sJSCR}, {i*1024}")
        a(f"buffer_load_dwordx4 v32, {sr(ST_, 4)}, s{sT1} offen lds")
        if i < 3: a(f"s_add_u32 s{sT1}, s{sT1}, {8*1280}")
    a(f"s_mov_b32 s{sJOB}, 1\ns_branch L_job_done")
    a("L_job_c:")
    a(f"s_sub_u32 s{sT0}, s{sWAVE}, 4\ns_cmp_gt_u32 s{sT0}, 1\ns_cbranch_scc1 L_job_done")
    a(f"s_lshl_b32 s{sT0}, s{sT0}, 8\ns_add_u32 s{sT0}, s{sT0}, s2\ns_cmp_ge_u32 s{sT0}, 400\ns_cbranch_scc1 L_job_done")
    a(f"s_cmp_ge_u32 s{sT0}, 200")
    a(f"s_cselect_b32 s{ST_}, s{P_CIM}, s{P_CRE}\ns_cselect_b32 s{ST_+1}, s{P_CIM+1}, s{P_CRE+1}\ns_mov_b32 s{ST_+2}, {640*1280}")
    a(f"s_cselect_b32 s{sT1}, 200, 0\ns_cselect_b32 s{sT3}, 74, 54\ns_sub_u32 s{sT0}, s{sT0}, s{sT1}")
    a(f"s_mul_i32 s{sJN}, s{sT0}, 52429\ns_lshr_b32 s{sJN}, s{sJN}, 18")
    a(f"s_mul_i32 s{sT1}, s{sJN}, 5\ns_sub_u32 s{sT1}, s{sT0}, s{sT1}")
    a(f"s_lshl_b32 s{sT2}, s{sT1}, 2\ns_add_u32 s{sT2}, s{sT2}, s{sT3}\ns_mul_i32 s{sJOUT}, s{sT2}, 5120")
    a(f"s_mul_i32 s{sT2}, s{sJN}, 20480\ns_lshl_b32 s{sT1}, s{sT1}, 8\ns_add_u32 s{sT1}, s{sT1}, s{sT2}")
    a(f"v_and_b32 v32, 15, v{vLANE}\nv_mul_u32_u24 v32, 0x500, v32\nv_lshrrev_b32 v33, 4, v{vLANE}\nv_lshl_add_u32 v32, v33, 4, v32")
    for i in range(4):
        a(f"buffer_load_dwordx4 {vr(JD+4*i, 4)}, v32, {sr(ST_, 4)}, s{sT1} offen offset:{i*64}")
    a(f"s_mov_b32 s{sJOB}, 2")
    a("L_job_done:")

def ntile_off(a, dst, n):
    a(f"s_mul_i32 s{sT0}, s{n}, 52\ns_lshr_b32 s{sT0}, s{sT0}, 8")
    a(f"s_mul_i32 s{sT1}, s{sT0}, {NKS*5120 - 5*1024}\ns_lshl_b32 s{dst}, s{n}, 10\ns_add_u32 s{dst}, s{dst}, s{sT1}")
    a(f"s_add_u32 s{dst}, s{dst}, s{sJOUT}\ns_add_u32 s{dst}, s{dst}, {W2P_OFF}")

def side_finish(a, tag, nyoung, nwait0):
    a(f"s_cmp_eq_u32 s{sJOB}, 0\ns_cbranch_scc1 L_sf_none_{tag}")
    a(f"v_lshlrev_b32 v33, 4, v{vLANE}")
    a(f"s_waitcnt vmcnt({nyoung})")
    a(f"s_cmp_eq_u32 s{sJOB}, 2\ns_cbranch_scc1 L_sf_c_{tag}")
    a(f"v_lshrrev_b32 v32, 5, v{vLANE}\nv_lshlrev_b32 v32, 11, v32")
    a(f"v_bfe_u32 v34, v{vLANE}, 4, 1\nv_lshl_add_u32 v32, v34, 9, v32")
    a(f"v_bfe_u32 v34, v{vLANE}, 2, 2\nv_lshl_add_u32 v32, v34, 7, v32")
    a(f"v_and_b32 v34, 3, v{vLANE}\nv_lshl_add_u32 v32, v34, 3, v32\nv_add_u32 v32, s{sJSCR}, v32")
    for nt in range(4):
        a(f"ds_read_b64_tr_b16 {vr(JD+4*nt, 2)}, v32 offset:{nt*32}\nds_read_b64_tr_b16 {vr(JD+2+4*nt, 2)}, v32 offset:{nt*32+1024}")
    a("s_waitcnt lgkmcnt(0)")
    for nt in range(4):
        ntile_off(a, sT2, sJN)
        a(f"buffer_store_dwordx4 {vr(JD+4*nt, 4)}, v33, {sr(SWS, 4)}, s{sT2} offen")
        a(f"s_add_u32 s{sJN}, s{sJN}, 1")
    a(f"s_branch L_sf_st_{tag}")
    a(f"L_sf_c_{tag}:")
    ntile_off(a, sT2, sJN)
    for i in range(4):
        a(f"buffer_store_dwordx4 {vr(JD+4*i, 4)}, v33, {sr(SWS, 4)}, s{sT2} offen")
        if i < 3: a(f"s_add_u32 s{sT2}, s{sT2}, 5120")
    a(f"L_sf_st_{tag}:")
    a(f"s_mov_b32 s{sJOB}, 0")
    a(f"s_waitcnt vmcnt({nwait0 + 4})\ns_branch L_sf_end_{tag}")
    a(f"L_sf_none_{tag}:")
    a(f"s_waitcnt vmcnt({nwait0})")
    a(f"L_sf_end_{tag}:")

def lane_addr_common(a, NT):
    a(f"v_lshrrev_b32 v32, 3, v{vLANE}\nv_and_b32 v33, 7, v{vLANE}")
    a(f"s_and_b32 s{sT0}, s{sWAVE}, 1\ns_lshl_b32 s{sT0}, s{sT0}, 2")
    a(f"v_lshrrev_b32 v34, 1, v32\nv_add_u32 v34, s{sT0}, v34\nv_xor_b32 v34, v33, v34\nv_lshlrev_b32 v35, 4, v34")
    a(f"v_mul_u32_u24 v{vB}, 0x500, v32\nv_add_u32 v{vB}, v{vB}, v35")
    a(f"v_and_b32 v44, 31, v{vLANE}\nv_lshrrev_b32 v45, 5, v{vLANE}\nv_bfe_u32 v46, v44, 1, 3\nv_xor_b32 v45, v45, v46")
    a(f"s_lshl_b32 s{sT0}, s{sA}, 1\nv_xor_b32 v45, s{sT0}, v45\nv_lshlrev_b32 v44, 7, v44")
    a(f"s_mul_i32 s{sT1}, s{sCGP}, {NT*4096}\ns_add_u32 s{sT1}, s{sT1}, {BBASE}")
    for ks in range(4):
        a(f"v_xor_b32 v{40+ks}, {2*ks}, v45\nv_lshl_add_u32 v{40+ks}, v{40+ks}, 4, v44\nv_add_u32 v{vBADDR[ks]}, s{sT1}, v{40+ks}")
    a(f"s_lshl_b32 s{sM0A}, s{sWAVE}, 10\ns_add_u32 s{sM0B}, s{sM0A}, {BBASE}\ns_mov_b32 s{sRING}, 0\ns_mov_b32 s{sSTG}, 0")

def zero_acc(a, NT):
    for i in range(16 * NT): a(f"v_mov_b32 v{ACC+i}, 0")
    for v in [vSA, vQA] + vSB[:NT] + vQB[:NT]: a(f"v_mov_b32 v{v}, 0")

def mainloop(a, kind, NT, tag, write_partials):
    nr = nreads(kind, NT)
    a("s_barrier")
    reads(a, kind, NT, 0, 0)
    a(f".p2align 3\nL_loop_{tag}:")
    reads(a, kind, NT, 1, 1); a(f"s_waitcnt lgkmcnt({nr})"); mfmas(a, kind, NT, 0, True)
    a(f"s_cmp_lg_u32 s{sSTG}, 9\ns_cbranch_scc1 L_nop_{tag}")
    write_partials(a)
    a(f"L_nop_{tag}:")
    reads(a, kind, NT, 0, 2); a(f"s_waitcnt lgkmcnt({nr})"); mfmas(a, kind, NT, 1, False)
    reads(a, kind, NT, 1, 3); a(f"s_waitcnt lgkmcnt({nr})"); mfmas(a, kind, NT, 0, False)
    a(f"s_cmp_eq_u32 s{sSTG}, 9\ns_cbranch_scc1 L_tail_{tag}")
    a(f"s_cmp_lt_u32 s{sSTG}, 8\ns_cbranch_scc1 L_w_{tag}\ns_waitcnt vmcnt(0)\nL_w_{tag}:")
    a(f"s_add_u32 s{sRING}, s{sRING}, 1\ns_cmp_eq_u32 s{sRING}, 3\ns_cselect_b32 s{sT1}, {3*BSTR}, 0\ns_cselect_b32 s{sRING}, 0, s{sRING}\ns_sub_u32 s{sT1}, {BSTR}, s{sT1}")
    for ks in range(4):
        a(f"v_add_u32 v{vBADDR[ks]}, s{sT1}, v{vBADDR[ks]}\nv_xor_b32 v{vAADDR[ks]}, 0x4000, v{vAADDR[ks]}")
    a(f"s_waitcnt vmcnt({NT}) lgkmcnt(0)\ns_barrier")
    reads(a, kind, NT, 0, 0)
    a(f"s_cmp_gt_u32 s{sSTG}, 7\ns_cbranch_scc1 L_nd_{tag}")
    dmaA(a)
    a(f"s_cmp_gt_u32 s{sSTG}, 6\ns_cbranch_scc1 L_nd_{tag}")
    dmaB(a, NT)
    a(f"L_nd_{tag}:")
    mfmas(a, kind, NT, 1, False)
    a(f"s_add_u32 s{sSTG}, s{sSTG}, 1\ns_branch L_loop_{tag}")
    a(f"L_tail_{tag}:")
    a("s_waitcnt lgkmcnt(0)\ns_barrier")

def xch_addr(a, NT, dst):
    a(f"s_mul_i32 s{sT0}, s{sCGP}, {NT*1024}\ns_add_u32 s{sT0}, s{sT0}, {XCH}\nv_lshlrev_b32 v{dst}, 4, v{vLANE}\nv_add_u32 v{dst}, s{sT0}, v{dst}")

def ffn_path(a, NT, tag):
    srd(a, SA0, P_WG, 640 * 3456); srd(a, SA1, P_WU, 640 * 3456); srd(a, SB, P_X, 2048 * 1280)
    a(f"L_pass_{tag}:")
    lane_addr_common(a, NT)
    a(f"v_and_b32 v34, 2, v32\nv_xor_b32 v34, v33, v34\nv_mul_u32_u24 v35, 0xd80, v32\nv_lshl_add_u32 v{vA[0]}, v34, 4, v35\nv_xor_b32 v34, 4, v34\nv_lshl_add_u32 v{vA[1]}, v34, 4, v35")
    a(f"s_mul_i32 s{sOFFA[0]}, s{sWAVE}, {8*3456}\ns_lshl_b32 s{sT0}, s{sU}, 7\ns_add_u32 s{sOFFA[0]}, s{sOFFA[0]}, s{sT0}\ns_mov_b32 s{sOFFA[1]}, s{sOFFA[0]}")
    a(f"s_mov_b32 s{sSTEPA}, {64*3456}")
    a(f"s_lshl_b32 s{sT0}, s{sWAVE}, 3\ns_add_u32 s{sT0}, s{sT0}, s{sR0}\ns_mul_i32 s{sOFFB[0]}, s{sT0}, 1280")
    for i in range(1, NT): a(f"s_add_u32 s{sOFFB[i]}, s{sOFFB[0]}, {i*64*1280}")
    dmaA(a); dmaB(a, NT); dmaA(a); dmaB(a, NT); dmaB(a, NT)
    a(f"v_bfe_u32 v32, v{vLANE}, 4, 1\nv_lshrrev_b32 v33, 5, v{vLANE}\nv_bfe_u32 v34, v{vLANE}, 2, 2\nv_and_b32 v35, 3, v{vLANE}")
    a(f"v_lshlrev_b32 v52, 13, v32\nv_lshl_add_u32 v52, v33, 10, v52\nv_lshl_add_u32 v52, v34, 7, v52")
    a(f"v_lshrrev_b32 v53, 1, v35\ns_lshl_b32 s{sT0}, s{sA}, 1\nv_add_u32 v53, s{sT0}, v53\nv_and_b32 v54, 2, v34\nv_xor_b32 v53, v53, v54\nv_lshlrev_b32 v54, 2, v32\nv_xor_b32 v53, v53, v54")
    a(f"v_lshl_add_u32 v52, v53, 4, v52\nv_and_b32 v53, 1, v35\nv_lshl_add_u32 v52, v53, 3, v52")
    for ks in range(4):
        a(f"s_xor_b32 s{sT0}, s{sA}, {ks}\ns_lshl_b32 s{sT0}, s{sT0}, 11\nv_add_u32 v{vAADDR[ks]}, s{sT0}, v52")
    zero_acc(a, NT)
    side_finish(a, tag, 4 + 3 * NT, 2 + 2 * NT)
    stamp(a, 1)
    def wp(a):
        xch_addr(a, NT, 32)
        a(f"s_lshl_b32 s{sT0}, s{sA}, 2\nv_add_u32 v33, s{sT0}, v32")
        for j in range(NT):
            a(f"v_permlane32_swap_b32 v{vSB[j]}, v{vQB[j]}")
        for j in range(NT):
            a(f"v_add_f32 v{vSB[j]}, v{vSB[j]}, v{vQB[j]}\nds_write_b32 v33, v{vSB[j]} offset:{j*1024}")
    mainloop(a, 'ffn', NT, tag, wp)
    X = 36
    for j in range(NT): a(f"ds_read_b128 {vr(X+4*j, 4)}, v32 offset:{j*1024}")
    mfmas(a, 'ffn', NT, 1, False)
    stamp(a, 2)
    AX = FA[0]; BX = FB[0]
    for d in range(1, 4): a(f"v_mov_b32 v{AX+d}, 0")
    for j in range(NT):
        for d in range(1, 4): a(f"v_mov_b32 v{BX+4*j+d}, 0")
    split_hilo(a, vSA, AX, 33)
    a("s_waitcnt lgkmcnt(0)")
    c0 = -2 * 0.7978845608028654 * 1.4426950408889634; c1 = c0 * 0.044715
    K = 60
    for j in range(NT):
        x = X + 4 * j
        a(f"v_add_f32 v{x}, v{x}, v{x+1}\nv_add_f32 v{x+2}, v{x+2}, v{x+3}\nv_add_f32 v{x}, v{x}, v{x+2}\nv_mov_b32 v{x+1}, v{x}")
    for j in range(NT):
        x = X + 4 * j
        a(f"v_permlane32_swap_b32 v{x}, v{x+1}")
    for j in range(NT):
        x = X + 4 * j
        row_stats(a, x, x + 1, x + 2)
        a(f"v_cvt_pk_bf16_f32 v{BX+4*j}, -v{x}, -v{x}")
        a(f"v_rcp_f32 v{x+2}, v{x+1}\nv_mul_f32 v{K+4*j+2}, v{x+1}, v{x+1}")
        a(f"v_mfma_f32_32x32x16_bf16 {vr(acc(j), 16)}, {vr(AX, 4)}, {vr(BX+4*j, 4)}, {vr(acc(j), 16)}")
        a(f"v_mul_f32 v{K+4*j}, {fh(c0)}, v{x+2}\nv_mul_f32 v{x+3}, v{x+2}, v{x+2}\nv_mul_f32 v{x+3}, v{x+3}, v{x+2}\nv_mul_f32 v{K+4*j+1}, {fh(c1)}, v{x+3}")
    a(f"v_bfe_u32 v32, v{vLANE}, 4, 1\nv_lshlrev_b32 v32, 10, v32\nv_lshrrev_b32 v33, 5, v{vLANE}\nv_lshl_add_u32 v32, v33, 8, v32\nv_and_b32 v33, 15, v{vLANE}\nv_lshl_add_u32 v32, v33, 4, v32")
    a(f"s_lshl_b32 s{sT2}, s{sU}, 1\ns_lshr_b32 s{sT0}, s{sA}, 1\ns_add_u32 s{sT2}, s{sT2}, s{sT0}\ns_lshl_b32 s{sT2}, s{sT2}, 12")
    a(f"s_and_b32 s{sT0}, s{sA}, 1\ns_lshl_b32 s{sT0}, s{sT0}, 9\ns_add_u32 s{sT2}, s{sT2}, s{sT0}")
    a(f"s_lshr_b32 s{sT3}, s{sR0}, 5\ns_mul_i32 s{sT0}, s{sCGP}, {NT}\ns_add_u32 s{sT3}, s{sT3}, s{sT0}")
    T = 80
    for j in range(NT):
        g = acc(j); k = K + 4 * j; O = 112 + 4 * (j & 1)
        for p in range(4): a(f"v_pk_mul_f32 {vr(T+2*p, 2)}, {vr(g+2*p, 2)}, {vr(g+2*p, 2)}")
        for p in range(4): a(f"v_pk_fma_f32 {vr(T+2*p, 2)}, {vr(T+2*p, 2)}, {vr(k, 2)}, {vr(k, 2)} op_sel:[0,1,0] op_sel_hi:[1,1,0]")
        for p in range(4): a(f"v_pk_mul_f32 {vr(T+2*p, 2)}, {vr(T+2*p, 2)}, {vr(g+2*p, 2)}")
        for e in range(8): a(f"v_exp_f32 v{T+e}, v{T+e}")
        for p in range(4): a(f"v_pk_mul_f32 {vr(T+8+2*p, 2)}, {vr(g+2*p, 2)}, {vr(g+8+2*p, 2)}")
        for p in range(4): a(f"v_pk_fma_f32 {vr(T+2*p, 2)}, {vr(T+2*p, 2)}, {vr(k+2, 2)}, {vr(k+2, 2)} op_sel_hi:[1,0,0]")
        for e in range(8): a(f"v_rcp_f32 v{T+e}, v{T+e}")
        a(f"s_lshr_b32 s{sT0}, s{sT3}, 1\ns_mul_i32 s{sT0}, s{sT0}, {NKS*4096}\ns_and_b32 s{sT1}, s{sT3}, 1\ns_lshl_b32 s{sT1}, s{sT1}, 11\ns_add_u32 s{sT0}, s{sT0}, s{sT1}\ns_add_u32 s{sT0}, s{sT0}, s{sT2}\ns_add_u32 s{sT3}, s{sT3}, 1")
        for p in range(4): a(f"v_pk_mul_f32 {vr(T+2*p, 2)}, {vr(T+2*p, 2)}, {vr(T+8+2*p, 2)}")
        for p in range(4): a(f"v_cvt_pk_bf16_f32 v{O+p}, v{T+2*p}, v{T+2*p+1}")
        a(f"buffer_store_dwordx4 {vr(O, 4)}, v32, {sr(SWS, 4)}, s{sT0} offen")
    stamp(a, 3)
    if tag == 'f2':
        a(f"s_sub_u32 s{sPASS}, s{sPASS}, 1\ns_cmp_eq_u32 s{sPASS}, 0\ns_cbranch_scc1 L_k1_end")
        a(f"s_add_u32 s{sU}, s{sU}, 1\ns_waitcnt vmcnt(0)\ns_barrier\ns_branch L_pass_{tag}")
    else:
        a("s_endpgm")

def cmul(a, dr, di, ar, ai, br, bi):
    a(f"v_mul_f32 v{dr}, v{ar}, v{br}\nv_mul_f32 v{di}, v{ar}, v{bi}\nv_fma_f32 v{dr}, -v{ai}, v{bi}, v{dr}\nv_fmac_f32 v{di}, v{ai}, v{br}")
def csq(a, r, i, t):
    a(f"v_mul_f32 v{t}, v{i}, v{i}\nv_mul_f32 v{i}, v{r}, v{i}\nv_fma_f32 v{r}, v{r}, v{r}, -v{t}\nv_add_f32 v{i}, v{i}, v{i}")
def horner(a, cr, ci, lr, li, xr, xi):
    a(f"v_fmac_f32 v{xr}, v{lr}, v{cr}\nv_fmac_f32 v{xi}, v{lr}, v{ci}\nv_fma_f32 v{xr}, -v{li}, v{ci}, v{xr}\nv_fmac_f32 v{xi}, v{li}, v{cr}")

def ssm_path(a):
    NT = 4; tag = 's4'
    LAM = [112, 116]; C2 = [114, 118]; L8 = 120; M128 = 122; vFLG = 124; vPERM = 125
    srd(a, SA0, P_X, 2048 * 1280); srd(a, SA1, P_X, 2048 * 1280)
    a(f"s_cmp_ge_u32 s{sWAVE}, 4")
    a(f"s_cselect_b32 s{SB}, s{P_BIM}, s{P_BRE}\ns_cselect_b32 s{SB+1}, s{P_BIM+1}, s{P_BRE+1}\ns_mov_b32 s{SB+2}, {640*1280}\ns_mov_b32 s{SB+3}, 0x20000")
    srd(a, SDBG, P_DBG, 256)
    a(f"s_lshl_b32 s{sT0}, s{sU}, 7\ns_lshl_b32 s{sT1}, s{sCGP}, 6\ns_add_u32 s{sT2}, s{sT0}, s{sT1}")
    a(f"v_and_b32 v52, 31, v{vLANE}\nv_add_u32 v52, s{sT2}, v52\nv_lshlrev_b32 v52, 1, v52")
    for P in range(2):
        for n, ptr in enumerate((P_LRE, P_LIM, P_LDT)):
            a(f"global_load_ushort v{56+3*P+n}, v52, {sr(ptr, 2)} offset:{64*P}")
    a(f"v_add_u32 v6, s{sT2}, v{vLANE}\nv_lshlrev_b32 v6, 4, v6")
    a(f"s_sub_u32 s{sT0}, 15, s{sRB}\ns_mul_i32 s{sT0}, s{sT0}, 10240\ns_add_u32 s{sT0}, s{sT0}, {GA_OFF}\nv_add_u32 v6, s{sT0}, v6")
    a(f"s_lshl_b32 s{sT0}, s{sU}, 1\ns_add_u32 s{sT0}, s{sT0}, s{sCGP}\ns_lshl_b32 s{sT0}, s{sT0}, 2\nv_mov_b32 v7, s{sT0}")
    a(f"s_cmp_lg_u32 s{sA}, 3\ns_cbranch_scc1 L_noclr")
    a("v_mov_b32 v64, 0\nv_mov_b32 v65, 0\nv_mov_b32 v66, 0\nv_mov_b32 v67, 0")
    a(f"buffer_store_dwordx4 v[64:67], v6, {sr(SWS, 4)}, 0 offen sc1")
    a("L_noclr:")
    lane_addr_common(a, NT)
    def perm(src, dst, t):
        a(f"v_bfe_u32 v{dst}, v{src}, 1, 1\nv_bfe_u32 v{t}, v{src}, 3, 2\nv_lshl_add_u32 v{dst}, v{t}, 1, v{dst}")
        a(f"v_and_b32 v{t}, 1, v{src}\nv_lshl_add_u32 v{dst}, v{t}, 3, v{dst}\nv_bfe_u32 v{t}, v{src}, 2, 1\nv_lshl_add_u32 v{dst}, v{t}, 4, v{dst}")
    a(f"s_lshl_b32 s{sT0}, s{sA}, 3\nv_add_u32 v53, s{sT0}, v32")
    perm(53, 54, 55)
    a(f"v_mul_u32_u24 v{vA[0]}, 0x500, v54\nv_add_u32 v{vA[0]}, v{vA[0]}, v35\nv_mov_b32 v{vA[1]}, v{vA[0]}")
    a(f"s_lshl_b32 s{sT0}, s{sRB}, 7\ns_lshl_b32 s{sT1}, s{sCGP}, 5\ns_add_u32 s{sT0}, s{sT0}, s{sT1}\ns_mul_i32 s{sOFFA[0]}, s{sT0}, 1280\ns_add_u32 s{sOFFA[1]}, s{sOFFA[0]}, {64*1280}")
    a(f"s_mov_b32 s{sSTEPA}, 0x80")
    a(f"s_lshl_b32 s{sT0}, s{sU}, 7\ns_lshl_b32 s{sT1}, s{sA}, 3\ns_add_u32 s{sT0}, s{sT0}, s{sT1}\ns_mul_i32 s{sOFFB[0]}, s{sT0}, 1280")
    for i in range(1, NT): a(f"s_add_u32 s{sOFFB[i]}, s{sOFFB[0]}, {i*32*1280}")
    a(f"s_lshl_b32 s{sT0}, s{sA}, 12")
    for ks in range(4): a(f"v_add_u32 v{vAADDR[ks]}, s{sT0}, v{40+ks}")
    dmaA(a); dmaB(a, NT); dmaA(a); dmaB(a, NT); dmaB(a, NT)
    a(f"v_and_b32 v53, 31, v{vLANE}")
    perm(53, vPERM, 55)
    zero_acc(a, NT)
    a(f"s_waitcnt vmcnt({4 + 3*NT})")
    a(f"s_cmp_lg_u32 s{sA}, 3\ns_cbranch_scc1 L_noflag")
    a(f"s_lshl_b32 s{sT0}, 1, s{sRB}\nv_mov_b32 v64, s{sT0}\ns_mov_b64 exec, 1")
    a(f"buffer_atomic_or v64, v7, {sr(SDBG, 4)}, 0 offen\ns_mov_b64 exec, -1")
    a("L_noflag:")
    LOG2E = fh(1.4426950408889634)
    for P in range(2):
        lr, li, dt = 56 + 3 * P, 57 + 3 * P, 58 + 3 * P
        l0, l1 = LAM[P], LAM[P] + 1; c0, c1 = C2[P], C2[P] + 1
        a(f"v_lshlrev_b32 v{lr}, 16, v{lr}\nv_lshlrev_b32 v{li}, 16, v{li}\nv_lshlrev_b32 v{dt}, 16, v{dt}")
        a(f"v_mul_f32 v{dt}, {LOG2E}, v{dt}\nv_exp_f32 v{dt}, v{dt}")
        rnd_bf(a, dt, 64)
        a(f"v_mul_f32 v64, v{dt}, v{lr}\nv_mul_f32 v65, v{dt}, v{li}\nv_mul_f32 v64, {LOG2E}, v64\nv_exp_f32 v64, v64")
        a(f"v_mul_f32 v65, 0.15915494, v65\nv_fract_f32 v65, v65\nv_cos_f32 v{l0}, v65\nv_sin_f32 v{l1}, v65")
        a(f"v_mul_f32 v66, v{lr}, v{lr}\nv_fmac_f32 v66, v{li}, v{li}\nv_rcp_f32 v66, v66")
        a(f"v_mul_f32 v{l0}, v{l0}, v64\nv_mul_f32 v{l1}, v{l1}, v64\nv_add_f32 v66, v66, v66")
        a(f"v_subrev_f32 v67, 1.0, v{l0}")
        a(f"v_mul_f32 v{c0}, v67, v{lr}\nv_fmac_f32 v{c0}, v{l1}, v{li}\nv_mul_f32 v{c0}, v{c0}, v66")
        a(f"v_mul_f32 v{c1}, v{l1}, v{lr}\nv_fma_f32 v{c1}, -v67, v{li}, v{c1}\nv_mul_f32 v{c1}, v{c1}, v66")
    a(f"v_cmp_gt_u32 vcc, 32, v{vLANE}")
    a(f"v_cndmask_b32 v{L8}, v{LAM[1]}, v{LAM[0]}, vcc\nv_cndmask_b32 v{L8+1}, v{LAM[1]+1}, v{LAM[0]+1}, vcc")
    for _ in range(3): csq(a, L8, L8 + 1, 64)
    a(f"v_mov_b32 v{M128}, v{L8}\nv_mov_b32 v{M128+1}, v{L8+1}")
    for _ in range(4): csq(a, M128, M128 + 1, 64)
    side_finish(a, tag, 4 + 3 * NT, 2 + 2 * NT)
    stamp(a, 1)
    def wp(a):
        xch_addr(a, NT, 32)
        a(f"s_lshl_b32 s{sT0}, s{sA}, 2\nv_add_u32 v33, s{sT0}, v32")
        for j in range(NT):
            split_hilo(a, vSB[j], vSB[j], 34 + j)
        for j in range(NT): a(f"ds_write_b32 v33, v{vSB[j]} offset:{j*1024}")
        a(f"buffer_load_dword v{vFLG}, v7, {sr(SDBG, 4)}, 0 offen sc1")
    mainloop(a, 'ssm', NT, tag, wp)
    BX = FB[0]; AX = FA[0]
    for j in range(NT): a(f"ds_read_b128 {vr(BX+4*j, 4)}, v32 offset:{j*1024}")
    mfmas(a, 'ssm', NT, 1, False)
    stamp(a, 2)
    a(f"v_permlane32_swap_b32 v{vSA}, v{vQA}\nv_add_f32 v{vSA}, v{vSA}, v{vQA}\nv_mov_b32 v{vQA}, v{vSA}\nv_permlane32_swap_b32 v{vSA}, v{vQA}")
    row_stats(a, vSA, vQA, 33)
    a(f"v_cvt_pk_bf16_f32 v{AX}, -v{vSA}, -v{vSA}\nv_rcp_f32 v{vQA}, v{vQA}")
    for d in range(1, 4): a(f"v_mov_b32 v{AX+d}, v{AX}")
    RS = XCH + 8192; AG = XCH + 12288; TR = XCH + 32768
    a(f"v_and_b32 v33, 3, v{vLANE}\nv_bfe_u32 v34, v{vLANE}, 3, 2\nv_lshl_add_u32 v33, v34, 2, v33\nv_bfe_u32 v34, v{vLANE}, 2, 1\nv_lshl_add_u32 v33, v34, 4, v33")
    a(f"s_lshl_b32 s{sT0}, s{sWAVE}, 7\ns_add_u32 s{sT0}, s{sT0}, {RS}\nv_lshlrev_b32 v33, 2, v33\nv_add_u32 v33, s{sT0}, v33")
    a(f"ds_write_b32 v33, v{vQA}")
    a(f"v_lshrrev_b32 v34, 5, v{vLANE}\nv_lshlrev_b32 v35, 6, v34\nv_add_u32 v35, s{sT0}, v35")
    a("s_waitcnt lgkmcnt(0)")
    R = 36
    for q in range(4): a(f"ds_read_b128 {vr(R+4*q, 4)}, v35 offset:{16*q}")
    for j in range(NT):
        a(f"v_mfma_f32_32x32x16_bf16 {vr(acc(j), 16)}, {vr(AX, 4)}, {vr(BX+4*j, 4)}, {vr(acc(j), 16)}")
    a(f"s_or_b32 s{sT0}, s{sU}, s{sCGP}\ns_cmp_lg_u32 s{sT0}, 0\ns_cbranch_scc1 L_nost")
    a(f"s_lshl_b32 s{sT0}, s{sRB}, 2\ns_add_u32 s{sT0}, s{sT0}, s{sA}\ns_lshl_b32 s{sT0}, s{sT0}, 8\ns_add_u32 s{sT0}, s{sT0}, {ST_OFF}")
    a(f"v_lshlrev_b32 v52, 3, v{vPERM}")
    a(f"buffer_store_dwordx2 {vr(vSA, 2)}, v52, {sr(SWS, 4)}, s{sT0} offen")
    a("L_nost:")
    a(f"s_mul_i32 s{sT0}, s{sCGP}, {64*144}\ns_add_u32 s{sT0}, s{sT0}, {AG}\nv_mul_u32_u24 v54, 0x90, v{vLANE}\nv_add_u32 v54, s{sT0}, v54")
    a(f"v_and_b32 v53, 31, v{vLANE}\nv_mul_u32_u24 v53, 0x90, v53\nv_lshl_add_u32 v53, v34, 4, v53\ns_lshl_b32 s{sT1}, s{sA}, 5\ns_add_u32 s{sT0}, s{sT0}, s{sT1}\nv_add_u32 v53, s{sT0}, v53")
    a("s_waitcnt lgkmcnt(0)")
    for j in range(NT):
        for p in range(8): a(f"v_pk_mul_f32 {vr(acc(j)+2*p, 2)}, {vr(acc(j)+2*p, 2)}, {vr(R+2*p, 2)}")
    def step(dr, di, sr_, si_, vr_, vi_, lam):
        return [f"v_pk_fma_f32 {vr(dr, 2)}, {vr(lam, 2)}, {vr(sr_, 2)}, {vr(vr_, 2)} op_sel_hi:[0,1,1]",
                f"v_pk_fma_f32 {vr(di, 2)}, {vr(lam, 2)}, {vr(si_, 2)}, {vr(vi_, 2)} op_sel_hi:[0,1,1]",
                f"v_pk_fma_f32 {vr(dr, 2)}, {vr(lam, 2)}, {vr(si_, 2)}, {vr(dr, 2)} op_sel:[1,0,0] neg_lo:[1,0,0] neg_hi:[1,0,0]",
                f"v_pk_fma_f32 {vr(di, 2)}, {vr(lam, 2)}, {vr(sr_, 2)}, {vr(di, 2)} op_sel:[1,0,0]"]
    for jj in range(1, 8):
        seqs = []
        for P in range(2):
            re, im = acc(2 * P), acc(2 * P + 1)
            d = 56 + 8 * P + 4 * (jj & 1); s = 56 + 8 * P + 4 * ((jj - 1) & 1)
            sr_, si_ = (re, im) if jj == 1 else (s, s + 2)
            seqs.append(step(d, d + 2, sr_, si_, re + 2 * jj, im + 2 * jj, LAM[P]))
        for x, y in zip(*seqs): a(x); a(y)
    for P in range(2): a(f"ds_write_b128 v53, {vr(56+8*P+4, 4)} offset:{P*32*144}")
    a("s_waitcnt lgkmcnt(0)\ns_barrier")
    G = 72
    def agr(q): return G + 4 * (q >> 1) + (q & 1)
    def agi(q): return G + 4 * (q >> 1) + 2 + (q & 1)
    a(f"s_cmp_lg_u32 s{sA}, 3\ns_cbranch_scc1 L_coef")
    for q in range(8): a(f"ds_read_b128 {vr(G+4*q, 4)}, v54 offset:{16*q}")
    a("s_waitcnt lgkmcnt(0)")
    cr, ci = agr(0), agi(0)
    for q in range(1, 16):
        d = 104 + 2 * (q & 1)
        a(f"v_fma_f32 v{d}, v{L8}, v{cr}, v{agr(q)}\nv_fma_f32 v{d+1}, v{L8}, v{ci}, v{agi(q)}\nv_fma_f32 v{d}, -v{L8+1}, v{ci}, v{d}\nv_fmac_f32 v{d+1}, v{L8+1}, v{cr}")
        cr, ci = d, d + 1
    a(f"v_mov_b32 v108, v{cr}\nv_mov_b32 v109, 1\nv_mov_b32 v110, v{ci}\nv_mov_b32 v111, 1")
    a(f"buffer_store_dwordx4 v[108:111], v6, {sr(SWS, 4)}, 0 offen sc1")
    a("L_coef:")
    for P in range(2):
        re, im = acc(2 * P), acc(2 * P + 1); c = C2[P]
        for p in range(8):
            t = 56 + 4 * (p & 1)
            a(f"v_pk_mul_f32 {vr(t, 2)}, {vr(c, 2)}, {vr(im+2*p, 2)} op_sel:[1,0]")
            a(f"v_pk_mul_f32 {vr(t+2, 2)}, {vr(c, 2)}, {vr(re+2*p, 2)} op_sel:[1,0]")
            a(f"v_pk_fma_f32 {vr(re+2*p, 2)}, {vr(c, 2)}, {vr(re+2*p, 2)}, {vr(t, 2)} op_sel_hi:[0,1,1] neg_lo:[0,0,1] neg_hi:[0,0,1]")
            a(f"v_pk_fma_f32 {vr(im+2*p, 2)}, {vr(c, 2)}, {vr(im+2*p, 2)}, {vr(t+2, 2)} op_sel_hi:[0,1,1]")
    a(f"s_cmp_lg_u32 s{sA}, 3\ns_cbranch_scc1 L_join")
    a(f"s_lshl_b32 s{sT2}, 1, s{sRB}\ns_sub_u32 s{sT2}, s{sT2}, 1\ns_mov_b32 s{sT3}, 0x40000")
    a("L_fpoll:")
    a(f"s_waitcnt vmcnt(0)\nv_readfirstlane_b32 s{sT0}, v{vFLG}\ns_and_b32 s{sT0}, s{sT0}, s{sT2}\ns_cmp_eq_u32 s{sT0}, s{sT2}\ns_cbranch_scc1 L_gpoll0")
    a(f"buffer_load_dword v{vFLG}, v7, {sr(SDBG, 4)}, 0 offen sc1\ns_sub_u32 s{sT3}, s{sT3}, 1\ns_cmp_lg_u32 s{sT3}, 0\ns_cbranch_scc1 L_fpoll")
    a("L_gpoll0:")
    LB = 128
    def lb(j): return LB + 4 * j if j < 12 else 36 + 4 * (j - 12)
    a(f"s_lshl_b32 s{sT2}, s{sRB}, 1")
    a("L_gpoll:")
    a(f"s_mov_b32 s{sT0}, 10240")
    for j in range(15):
        a(f"buffer_load_dwordx4 {vr(lb(j), 4)}, v6, {sr(SWS, 4)}, s{sT0} offen sc1")
        if j < 14: a(f"s_add_u32 s{sT0}, s{sT0}, 10240")
    a("s_waitcnt vmcnt(0)")
    a(f"v_add_u32 v104, v{lb(0)+1}, v{lb(0)+3}")
    for j in range(1, 15): a(f"v_add3_u32 v104, v{lb(j)+1}, v{lb(j)+3}, v104")
    a(f"v_cmp_ne_u32 vcc, s{sT2}, v104\ns_cmp_eq_u64 vcc, 0\ns_cbranch_scc1 L_gdone")
    a(f"s_sub_u32 s{sT3}, s{sT3}, 1\ns_cmp_gt_i32 s{sT3}, 0\ns_cbranch_scc1 L_gpoll")
    a("L_gdone:")
    for j in range(13, -1, -1):
        horner(a, lb(j + 1), lb(j + 1) + 2, M128, M128 + 1, lb(j), lb(j) + 2)
    CY = 136
    def cyr(q): return CY + 4 * (q >> 1) + (q & 1)
    def cyi(q): return CY + 4 * (q >> 1) + 2 + (q & 1)
    a(f"v_mov_b32 v{cyr(0)}, v{lb(0)}\nv_mov_b32 v{cyi(0)}, v{lb(0)+2}")
    for q in range(15):
        a(f"v_fma_f32 v{cyr(q+1)}, v{L8}, v{cyr(q)}, v{agr(q)}\nv_fma_f32 v{cyi(q+1)}, v{L8}, v{cyi(q)}, v{agi(q)}\nv_fma_f32 v{cyr(q+1)}, -v{L8+1}, v{cyi(q)}, v{cyr(q+1)}\nv_fmac_f32 v{cyi(q+1)}, v{L8+1}, v{cyr(q)}")
        if q & 1 == 0: a(f"ds_write_b128 v54, {vr(CY+4*(q>>1), 4)} offset:{16*(q>>1)}")
    a("s_waitcnt lgkmcnt(0)")
    a("L_join:")
    a("s_barrier")
    stamp(a, 4)
    for P in range(2): a(f"ds_read_b128 {vr(56+8*P, 4)}, v53 offset:{P*32*144}")
    a(f"s_mul_i32 s{sT0}, s{sWAVE}, 2560\ns_add_u32 s{sT0}, s{sT0}, {TR}")
    a(f"v_and_b32 v33, 31, v{vLANE}\nv_mul_u32_u24 v33, 0x50, v33\nv_lshl_add_u32 v33, v34, 5, v33\nv_add_u32 v33, s{sT0}, v33")
    a(f"v_lshrrev_b32 v35, 4, v{vLANE}\nv_lshlrev_b32 v35, 3, v35\nv_bfe_u32 v36, v{vLANE}, 2, 2\nv_add_u32 v35, v35, v36\nv_mul_u32_u24 v35, 0x50, v35\nv_and_b32 v36, 3, v{vLANE}\nv_lshl_add_u32 v35, v36, 3, v35\nv_add_u32 v35, s{sT0}, v35")
    a(f"v_lshlrev_b32 v32, 4, v{vLANE}")
    a(f"s_lshl_b32 s{sT0}, s{sRB}, 1\ns_lshr_b32 s{sT1}, s{sA}, 1\ns_add_u32 s{sT0}, s{sT0}, s{sT1}\ns_mul_i32 s{sT0}, s{sT0}, {NKS}")
    a(f"s_lshl_b32 s{sT1}, s{sU}, 2\ns_add_u32 s{sT0}, s{sT0}, s{sT1}\ns_lshl_b32 s{sT1}, s{sCGP}, 1\ns_add_u32 s{sT0}, s{sT0}, s{sT1}\ns_add_u32 s{sT0}, s{sT0}, 54\ns_lshl_b32 s{sT0}, s{sT0}, 12")
    a(f"s_and_b32 s{sT1}, s{sA}, 1\ns_lshl_b32 s{sT1}, s{sT1}, 11\ns_add_u32 s{sT2}, s{sT0}, s{sT1}")
    a("s_waitcnt lgkmcnt(0)")
    for P in range(2):
        s = 56 + 8 * P; d = s + 4; c = C2[P]
        a(f"v_pk_mul_f32 {vr(d, 2)}, {vr(c, 2)}, {vr(s, 2)} op_sel_hi:[0,1]\nv_pk_mul_f32 {vr(d+2, 2)}, {vr(c, 2)}, {vr(s+2, 2)} op_sel_hi:[0,1]")
        a(f"v_pk_fma_f32 {vr(d, 2)}, {vr(c, 2)}, {vr(s+2, 2)}, {vr(d, 2)} op_sel:[1,0,0] neg_lo:[1,0,0] neg_hi:[1,0,0]\nv_pk_fma_f32 {vr(d+2, 2)}, {vr(c, 2)}, {vr(s, 2)}, {vr(d+2, 2)} op_sel:[1,0,0]")
    for jj in range(8):
        seqs = []
        for P in range(2):
            re, im = acc(2 * P), acc(2 * P + 1)
            sr_, si_ = (60 + 8 * P, 62 + 8 * P) if jj == 0 else (re + 2 * jj - 2, im + 2 * jj - 2)
            seqs.append(step(re + 2 * jj, im + 2 * jj, sr_, si_, re + 2 * jj, im + 2 * jj, LAM[P]))
        for x, y in zip(*seqs): a(x); a(y)
    for j in range(NT):
        P, mat = j >> 1, j & 1
        g = acc(j); W = 72 + 8 * (j & 1); O = 88 + 8 * (j & 1); n = '-' if mat else ''
        for b in range(2):
            for p in range(4): a(f"v_cvt_pk_bf16_f32 v{W+4*b+p}, {n}v{g+4*p+b}, {n}v{g+4*p+2+b}")
        if j: a("s_waitcnt lgkmcnt(0)")
        if j:
            pj = j - 1; pO = 88 + 8 * (pj & 1)
            a(f"s_add_u32 s{sT0}, s{sT2}, {((pj >> 1) + 20 * (pj & 1)) * 4096}")
            for rt in range(2): a(f"buffer_store_dwordx4 {vr(pO+4*rt, 4)}, v32, {sr(SWS, 4)}, s{sT0} offen offset:{rt*1024}")
        a(f"ds_write_b128 v33, {vr(W, 4)}\nds_write_b128 v33, {vr(W+4, 4)} offset:16")
        a("s_waitcnt lgkmcnt(0)")
        for rt in range(2):
            a(f"ds_read_b64_tr_b16 {vr(O+4*rt, 2)}, v35 offset:{rt*32}\nds_read_b64_tr_b16 {vr(O+4*rt+2, 2)}, v35 offset:{rt*32+320}")
    a("s_waitcnt lgkmcnt(0)")
    pj = NT - 1; pO = 88 + 8 * (pj & 1)
    a(f"s_add_u32 s{sT0}, s{sT2}, {((pj >> 1) + 20 * (pj & 1)) * 4096}")
    for rt in range(2): a(f"buffer_store_dwordx4 {vr(pO+4*rt, 4)}, v32, {sr(SWS, 4)}, s{sT0} offen offset:{rt*1024}")
    stamp(a, 3)
    a("s_endpgm")

def code_prefetch(a, pc_label, shift_threads):
    a(f"s_getpc_b64 s[{sT0}:{sT1}]\n{pc_label}:")
    a(f"v_lshlrev_b32 v2, 7, v0\nv_min_u32 v2, L_code_end-{pc_label}-4, v2\nv_mov_b32 v3, 0\nv_lshl_add_u64 v[2:3], v[2:3], 0, s[{sT0}:{sT1}]")
    a("global_load_dword v4, v[2:3], off")

def k1(a):
    a(".globl k1_kernel\n.p2align 8\n.type k1_kernel,@function\nk1_kernel:")
    a("s_cmp_ge_u32 s2, 256\ns_cbranch_scc1 L_k1_end")
    a("s_load_dwordx16 s[36:51], s[0:1], 0\ns_load_dwordx16 s[52:67], s[0:1], 64")
    code_prefetch(a, "L_pc1", 0)
    a(f"v_lshrrev_b32 v5, 6, v0\nv_and_b32 v{vLANE}, 63, v0\nv_readfirstlane_b32 s{sWAVE}, v5")
    a(f"s_and_b32 s{sXCD}, s2, 7\ns_lshr_b32 s{sSLOT}, s2, 3\ns_mov_b32 s{sONES}, 0x3f803f80")
    a(f"s_and_b32 s{sA}, s{sWAVE}, 3\ns_lshr_b32 s{sCGP}, s{sWAVE}, 2")
    a("s_waitcnt lgkmcnt(0)")
    stamp(a, 0)
    srd(a, SWS, P_WS, WS_USED)
    side_issue(a)
    a(f"s_cmp_lt_u32 s{sSLOT}, 10\ns_cbranch_scc1 L_ssm")
    a(f"s_mul_i32 s{sT0}, s{sXCD}, 22\ns_add_u32 s{sT0}, s{sT0}, s{sSLOT}\ns_sub_u32 s{sT0}, s{sT0}, 10")
    a(f"s_mul_i32 s{sT1}, s{sT0}, 5042\ns_lshr_b32 s{sT1}, s{sT1}, 16")
    a(f"s_mul_i32 s{sT2}, s{sT1}, 13\ns_sub_u32 s{sT2}, s{sT0}, s{sT2}\ns_lshl_b32 s{sU}, s{sT1}, 1")
    a(f"s_cmp_eq_u32 s{sT2}, 6\ns_cbranch_scc1 L_f2")
    a(f"s_cmp_gt_u32 s{sT2}, 6\ns_cselect_b32 s{sT0}, 1, 0\ns_cselect_b32 s{sT1}, 7, 0\ns_add_u32 s{sU}, s{sU}, s{sT0}\ns_sub_u32 s{sT2}, s{sT2}, s{sT1}\ns_mul_i32 s{sR0}, s{sT2}, 320")
    ffn_path(a, 5, 'f5')
    a("L_f2:")
    a(f"s_mov_b32 s{sR0}, 1920\ns_cmp_eq_u32 s{sU}, 26\ns_cselect_b32 s{sPASS}, 1, 2")
    ffn_path(a, 2, 'f2')
    a("L_ssm:")
    a(f"s_mul_i32 s{sT0}, s{sXCD}, 10\ns_add_u32 s{sT0}, s{sT0}, s{sSLOT}\ns_lshr_b32 s{sU}, s{sT0}, 4\ns_and_b32 s{sRB}, s{sT0}, 15")
    ssm_path(a)
    a("L_k1_end:\ns_endpgm")

def k2(a):
    DEPTH = 4
    a(".globl k2_kernel\n.p2align 8\n.type k2_kernel,@function\nk2_kernel:")
    a("s_cmp_ge_u32 s2, 256\ns_cbranch_scc1 L_k2_end")
    a("s_load_dwordx2 s[36:37], s[0:1], 0\ns_load_dwordx2 s[52:53], s[0:1], 64\ns_load_dwordx2 s[62:63], s[0:1], 104\ns_load_dwordx2 s[66:67], s[0:1], 120")
    a(f"v_lshrrev_b32 v5, 6, v0\nv_and_b32 v{vLANE}, 63, v0\nv_readfirstlane_b32 s{sWAVE}, v5")
    sRB2, sCB, sOA, sOW = 70, 71, 72, 73
    a(f"s_and_b32 s{sT0}, s2, 7\ns_lshr_b32 s{sT1}, s2, 3")
    a(f"s_lshr_b32 s{sRB2}, s{sT0}, 1\ns_lshl_b32 s{sRB2}, s{sRB2}, 3\ns_lshr_b32 s{sT2}, s{sT1}, 2\ns_add_u32 s{sRB2}, s{sRB2}, s{sT2}")
    a(f"s_and_b32 s{sCB}, s{sT0}, 1\ns_lshl_b32 s{sCB}, s{sCB}, 2\ns_and_b32 s{sT2}, s{sT1}, 3\ns_add_u32 s{sCB}, s{sCB}, s{sT2}")
    a(f"v_lshlrev_b32 v2, 4, v{vLANE}\nv_add_u32 v3, 0x1000, v2")
    a(f"s_mul_i32 s{sOA}, s{sRB2}, {NKS*4096}\ns_add_u32 s{SA0+2}, s{sOA}, {NKS*4096 + A2_OFF}")
    a(f"s_mul_i32 s{sOW}, s{sCB}, {NKS*5120}\ns_add_u32 s{sOW}, s{sOW}, {W2P_OFF}\ns_add_u32 s{SA1+2}, s{sOW}, {NKS*5120}")
    a(f"s_lshl_b32 s{sT0}, s{sWAVE}, 12\ns_add_u32 s{sOA}, s{sOA}, s{sT0}\ns_mul_i32 s{sT0}, s{sWAVE}, 5120\ns_add_u32 s{sOW}, s{sOW}, s{sT0}")
    a(f"s_mov_b32 s{SA0+3}, 0x20000\ns_mov_b32 s{SA1+3}, 0x20000")
    a("s_waitcnt lgkmcnt(0)")
    stamp(a, 0, 1)
    a(f"s_mov_b32 s{SA0}, s{P_WS}\ns_mov_b32 s{SA0+1}, s{P_WS+1}\ns_mov_b32 s{SA1}, s{P_WS}\ns_mov_b32 s{SA1+1}, s{P_WS+1}")
    BUF = 112
    def buf(i): return BUF + 36 * i
    def loads(i):
        b = buf(i)
        for j in range(4): a(f"buffer_load_dwordx4 {vr(b+4*j, 4)}, v2, {sr(SA1, 4)}, s{sOW} offen offset:{j*1024}")
        a(f"buffer_load_dwordx4 {vr(b+16, 4)}, v3, {sr(SA1, 4)}, s{sOW} offen")
        for r in range(4): a(f"buffer_load_dwordx4 {vr(b+20+4*r, 4)}, v2, {sr(SA0, 4)}, s{sOA} offen offset:{r*1024}")
        a(f"s_add_u32 s{sOA}, s{sOA}, {4*4096}\ns_add_u32 s{sOW}, s{sOW}, {4*5120}")
    for i in range(DEPTH): loads(i)
    for i in range(80): a(f"v_mov_b32 v{32+i}, 0")
    a(f"s_mov_b32 s{sSTG}, 0")
    a(".p2align 3\nL_k2_loop:")
    for i in range(DEPTH):
        b = buf(i)
        a(f"s_waitcnt vmcnt({9*(DEPTH-1)})")
        for j in range(5):
            for r in range(4):
                c = 32 + 4 * (4 * j + r)
                a(f"v_mfma_f32_16x16x32_bf16 {vr(c, 4)}, {vr(b+4*j, 4)}, {vr(b+20+4*r, 4)}, {vr(c, 4)}")
        loads(i)
    a(f"s_add_u32 s{sSTG}, s{sSTG}, 1\ns_cmp_lt_u32 s{sSTG}, {24 // DEPTH}\ns_cbranch_scc1 L_k2_loop")
    stamp(a, 1, 1)
    srd(a, SB, P_X, 2048 * 1280); srd(a, SWS, P_WS, WS_USED); srd(a, ST_, P_DSK, 1280); srd(a, SDBG, P_OUT, 2048 * 2560)
    RES = 112
    a("s_waitcnt vmcnt(0)")
    a(f"s_mul_i32 s{sT0}, s{sRB2}, {64*1280}\ns_mul_i32 s{sT1}, s{sCB}, 160\ns_add_u32 s{sT0}, s{sT0}, s{sT1}")
    a(f"s_lshl_b32 s{sT2}, s{sRB2}, 9\ns_add_u32 s{sT2}, s{sT2}, {ST_OFF}\ns_lshl_b32 s{sT3}, s{sT0}, 1")
    for i in range(5):
        b = RES + 8 * i
        a(f"v_add_u32 v6, {256*i}, v0\nv_mul_u32_u24 v7, 0xccd, v6\nv_lshrrev_b32 v7, 16, v7\nv_mul_u32_u24 v8, 20, v7\nv_sub_u32 v8, v6, v8")
        a(f"v_mul_u32_u24 v9, 0x500, v7\nv_lshl_add_u32 v9, v8, 3, v9\nv_lshlrev_b32 v10, 3, v8\nv_lshlrev_b32 v11, 3, v7")
        a(f"buffer_load_dwordx2 {vr(b, 2)}, v9, {sr(SB, 4)}, s{sT0} offen\nbuffer_load_dwordx2 {vr(b+2, 2)}, v10, {sr(ST_, 4)}, s{sT1} offen\nbuffer_load_dwordx2 {vr(b+4, 2)}, v11, {sr(SWS, 4)}, s{sT2} offen")
        a(f"v_mul_u32_u24 v{b+6}, 0x150, v7\nv_lshl_add_u32 v{b+6}, v8, 4, v{b+6}\nv_lshlrev_b32 v{b+7}, 1, v9")
    PW = 64 * 336
    a(f"v_and_b32 v6, 15, v{vLANE}\nv_mul_u32_u24 v6, 0x150, v6\nv_lshrrev_b32 v7, 4, v{vLANE}\nv_lshl_add_u32 v6, v7, 4, v6\ns_mul_i32 s{sOA}, s{sWAVE}, {PW}\nv_add_u32 v6, s{sOA}, v6")
    for j in range(5):
        for r in range(4):
            a(f"ds_write_b128 v6, {vr(32+4*(4*j+r), 4)} offset:{r*16*336 + j*64}")
    a("s_waitcnt lgkmcnt(0)\ns_barrier")
    for i in range(5):
        b = RES + 8 * i
        for w in range(4): a(f"ds_read_b128 {vr(32+16*i+4*w, 4)}, v{b+6} offset:{w*PW}")
    a("s_waitcnt vmcnt(0)")
    for i in range(5):
        b = RES + 8 * i; t = 160 + 12 * i
        a(f"v_lshlrev_b32 v{t}, 16, v{b}\nv_and_b32 v{t+1}, 0xffff0000, v{b}\nv_lshlrev_b32 v{t+2}, 16, v{b+1}\nv_and_b32 v{t+3}, 0xffff0000, v{b+1}")
        a(f"v_lshlrev_b32 v{t+4}, 16, v{b+2}\nv_and_b32 v{t+5}, 0xffff0000, v{b+2}\nv_lshlrev_b32 v{t+6}, 16, v{b+3}\nv_and_b32 v{t+7}, 0xffff0000, v{b+3}")
        for e in range(4):
            a(f"v_sub_f32 v{t+8+e}, v{t+e}, v{b+4}\nv_mul_f32 v{t+8+e}, v{t+8+e}, v{b+5}\nv_fmac_f32 v{t+e}, v{t+8+e}, v{t+4+e}")
    for i in range(5):
        b = RES + 8 * i; t = 160 + 12 * i; p = 32 + 16 * i
        a(f"s_waitcnt lgkmcnt({min(15, 4*(4-i))})")
        for h in range(2):
            a(f"v_pk_add_f32 {vr(p+2*h, 2)}, {vr(p+2*h, 2)}, {vr(p+4+2*h, 2)}\nv_pk_add_f32 {vr(p+8+2*h, 2)}, {vr(p+8+2*h, 2)}, {vr(p+12+2*h, 2)}")
            a(f"v_pk_add_f32 {vr(p+2*h, 2)}, {vr(p+2*h, 2)}, {vr(p+8+2*h, 2)}\nv_pk_add_f32 {vr(p+2*h, 2)}, {vr(p+2*h, 2)}, {vr(t+2*h, 2)}")
        a(f"buffer_store_dwordx4 {vr(p, 4)}, v{b+7}, {sr(SDBG, 4)}, s{sT3} offen")
    stamp(a, 2, 1)
    a("L_k2_end:\ns_endpgm")

def gen():
    a = Asm()
    k1(a); k2(a)
    a("L_code_end:")
    n = a.pad()
    hdr = open("cdna_kernels/" + NAME + ".s.ref").read().split("; Override")[0]
    o = hdr
    o += "; @launch kernel=k1_kernel grid=(256,1,1) block=(512,1,1) lds=163840\n"
    o += f"; @launch kernel=k2_kernel grid=(256,1,1) block=(256,1,1) lds={4*64*336}\n"
    o += '.amdgcn_target "amdgcn-amd-amdhsa--gfx950"\n.text\n' + a.text()
    o += '.section .rodata,"a"\n' + kdesc("k1_kernel", 256) + kdesc("k2_kernel", 256)
    return o

if __name__ == "__main__":
    out = sys.argv[1] if len(sys.argv) > 1 else "k.s"
    if len(sys.argv) > 2 and sys.argv[2] == 'stamp': STAMP = True
    open(out, "w").write(gen())
```
